```python
import torch

def _softmax(x, axis=-1):
    return torch.softmax(x, dim=axis)
def _gelu(x):
    return torch.nn.functional.gelu(x, approximate="tanh")
def _silu(x):
    return torch.nn.functional.silu(x)
def _sigmoid(x):
    return torch.sigmoid(x)
def _layernorm(x, axis=-1, eps=1e-5):
    m = x.mean(dim=axis, keepdim=True)
    v = x.var(dim=axis, keepdim=True, unbiased=False)
    return (x - m) / torch.sqrt(v + eps)
def _scatter_add(tgt, idx, src, axis=0):
    return tgt.clone().index_add_(axis, idx, src)
def _segment_sum(src, seg, n):
    out = torch.zeros((n,) + src.shape[1:], dtype=src.dtype)
    return out.index_add_(0, seg, src)
def _pad(x, pw):
    flat = tuple(v for pair in reversed(pw) for v in pair)
    return torch.nn.functional.pad(x, flat)

kernel_name = 'standalone__dcn_v2_cross__recsys'

def setup_inputs():

    _w = (lambda a: (lambda t: t.to(torch.bfloat16) if t.is_floating_point() else t)(torch.as_tensor(a)))
    B, F, D, L = 4096, 26, 128, 6
    Din = min(F * D, 1024)
    return {
        "x0": _w((lambda *s: torch.randn(*s, dtype=torch.bfloat16) * 0.05)(B, Din)),
        "ws": _w((lambda *s: torch.randn(*s, dtype=torch.bfloat16) * 0.05)(L, Din, Din)),
        "bs": _w((lambda *s: torch.randn(*s, dtype=torch.bfloat16) * 0.05)(L, Din)),
    }

def reference(x0, ws, bs):
    x = x0
    for l in range(ws.shape[0]):
        x = x0 * (x @ ws[l] + bs[l]) + x
    return x
```

```python
class Asm:
    def __init__(self):
        self.l = []
    def __call__(self, s=''):
        for line in s.split('\n'):
            self.l.append(line)
        return self
    def text(self):
        return '\n'.join(self.l) + '\n'

def header(launch_lines, comments=()):
    out = []
    for c in comments: out.append('; ' + c)
    for l in launch_lines: out.append('; @launch ' + l)
    out.append('.amdgcn_target "amdgcn-amd-amdhsa--gfx950"')
    out.append('.text')
    return '\n'.join(out) + '\n'

def kernel_begin(name):
    return f'.globl {name}\n.p2align 8\n.type {name},@function\n{name}:\n'

def kernel_desc(name, vgpr, sgpr, accum, extra=''):
    return (f'.amdhsa_kernel {name}\n'
            f'  .amdhsa_next_free_vgpr {vgpr}\n'
            f'  .amdhsa_next_free_sgpr {sgpr}\n'
            f'  .amdhsa_accum_offset {accum}\n'
            f'  .amdhsa_group_segment_fixed_size 0\n'
            f'  .amdhsa_kernarg_size 48\n'
            f'  .amdhsa_user_sgpr_count 2\n'
            f'  .amdhsa_user_sgpr_kernarg_segment_ptr 1\n'
            f'  .amdhsa_system_sgpr_workgroup_id_x 1\n'
            f'{extra}'
            f'.end_amdhsa_kernel\n')
RODATA = '.section .rodata,"a"\n.p2align 6\n'
```

```python
import sys
from asmlib import Asm

NAME = 'standalone__dcn_v2_cross__recsys_kernel'
XB = 0x100000
WS_BYTES = 0x4000000
NL = 6

class Q:
    def __init__(self): self.q = []
    def issue(self, tag): self.q.append(tag)
    def need(self, tags):
        idx = -1
        for i, t in enumerate(self.q):
            if t in tags: idx = i
        if idx < 0: return None
        n = len(self.q) - 1 - idx
        self.q = self.q[idx+1:]
        return n

S_X0, S_W, S_B, S_O, S_D, S_S = 16, 20, 24, 28, 32, 36
sWAVE, sG, sJ, sIL = 40, 41, 42, 43
ACC, X0F, XO, WF, XF, BI = 0, 64, 128, 160, 192, 224
vWA = 240
vXA = 244
vPUB = 245
vIO = 246
vBO = 247
vFO = 248
vFV = 249
vT = 250

def srd(a, s, lo, size):
    a(f'  s_mov_b32 s{s}, s{lo}\n  s_mov_b32 s{s+1}, s{lo+1}\n  s_mov_b32 s{s+2}, {size:#x}\n  s_mov_b32 s{s+3}, 0x20000')

def gen(cfg=None):
    c = dict(timing=False, xlead=7, wmid=4, spin=400000, prio=0, lastnt=False, force_slow=False)
    if cfg: c.update(cfg)
    a = Asm()
    a(f'''; DCN-v2 cross network, B=4096 D=1024 L=6 (bf16): x <- x0 * (x @ W_l + b_l) + x
; @launch grid=(256,1,1) block=(512,1,1) lds=163840
.amdgcn_target "amdgcn-amd-amdhsa--gfx950"
.text
.globl {NAME}
.p2align 8
.type {NAME},@function
{NAME}:''')
    a(f'''
  s_cmp_ge_u32 s2, 256
  s_cbranch_scc1 L_end
  s_load_dwordx4 s[4:7], s[0:1], 0
  s_load_dwordx4 s[8:11], s[0:1], 16
  s_load_dwordx4 s[12:15], s[0:1], 32
  v_lshrrev_b32 v1, 6, v0
  v_and_b32 v0, 63, v0
  s_and_b32 s44, s2, 7
  v_readfirstlane_b32 s{sWAVE}, v1
  s_lshr_b32 s45, s2, 3
  s_lshr_b32 s{sIL}, s45, 3        ; il
  s_and_b32 s{sJ}, s45, 7          ; j
  s_lshl_b32 s44, s44, 2
  s_add_u32 s{sG}, s44, s{sIL}
  s_waitcnt lgkmcnt(0)''')
    srd(a, S_X0, 4, 0x800000); srd(a, S_W, 6, 0xC00000); srd(a, S_B, 8, 0x3000)
    srd(a, S_O, 10, 0x800000); srd(a, S_D, 12, 256); srd(a, S_S, 14, WS_BYTES)
    a(f'''
  s_cmp_ge_u32 s{sWAVE}, 6
  s_cbranch_scc1 L_wload
  s_cmp_ge_u32 s{sWAVE}, 4
  s_cbranch_scc1 L_xload
''')
    compute(a, c)
    xloader(a, c)
    wloader(a, c)
    a(f'''
L_end:
  s_endpgm
.section .rodata,"a"
.p2align 6
.amdhsa_kernel {NAME}
  .amdhsa_next_free_vgpr 256
  .amdhsa_next_free_sgpr 96
  .amdhsa_accum_offset 256
  .amdhsa_group_segment_fixed_size 0
  .amdhsa_kernarg_size 48
  .amdhsa_user_sgpr_count 2
  .amdhsa_user_sgpr_kernarg_segment_ptr 1
  .amdhsa_system_sgpr_workgroup_id_x 1
.end_amdhsa_kernel''')
    return a.text()

sWM, sWN, sL, sQ, sGRP, sDL, sMODE, sPB, sT0, sT1, sBOFF, sIOB, sCUP, sCDN = 44, 45, 46, 47, 48, 49, 50, 51, 52, 53, 54, 55, 56, 57

def acc(nt, mt): return ACC + 16*mt + 4*nt
def x0f(nt, mt): return X0F + 16*mt + 4*nt
def xo(u, mt): return XO + 4*(4*u + mt)

def step_reads(setp, slot_x, slot_w):
    def wr(nt):
        r = WF + 16*setp + 4*nt
        o = slot_w*8192
        return [(('W', setp, nt), f'  ds_read_b64_tr_b16 v[{r}:{r+1}], v{vWA+nt} offset:{o}'),
                (('W', setp, nt), f'  ds_read_b64_tr_b16 v[{r+2}:{r+3}], v{vWA+nt} offset:{o+4096}')]
    def xr(mt):
        r = XF + 16*setp + 4*mt
        return [(('x', setp, mt), f'  ds_read_b128 v[{r}:{r+3}], v{vXA} offset:{slot_x*8192 + mt*1024}')]
    return wr(0) + xr(0) + wr(1) + wr(2) + wr(3) + xr(1) + xr(2) + xr(3)

def emit_step(a, q, setp, nxt, pre=(), cinit=False, post=None):
    k = 0
    for i in range(16):
        mt, nt = i//4, i % 4
        n = q.need({('W', setp, nt), ('x', setp, mt)})
        if n is not None: a(f'  s_waitcnt lgkmcnt({min(n, 15)})')
        d = acc(nt, mt); w = WF + 16*setp + 4*nt; x = XF + 16*setp + 4*mt
        cs = BI + 4*nt if cinit else d
        a(f'  v_mfma_f32_16x16x32_bf16 v[{d}:{d+3}], v[{w}:{w+3}], v[{x}:{x+3}], v[{cs}:{cs+3}]')
        if i == 0:
            for l in pre: a(l)
        elif k < len(nxt):
            tag, t = nxt[k]; k += 1
            a(t); q.issue(tag)
        if post and i in post:
            for l in post[i]: a(l)
    assert k == len(nxt)

def bias_unpack(a):
    for nt in range(4):
        for h in range(2):
            src = BI + 8 + 2*nt + h
            d = BI + 4*nt + 2*h
            a(f'  v_lshlrev_b32 v{d}, 16, v{src}' if d != src else f'  v_lshlrev_b32 v{vT}, 16, v{src}')
            a(f'  v_and_b32 v{d+1}, 0xffff0000, v{src}')
            if d == src: a(f'  v_mov_b32 v{d}, v{vT}')

def bias_loads(a_lines, soff):
    for nt in range(4):
        r = BI + 8 + 2*nt
        a_lines.append(f'  buffer_load_dwordx2 v[{r}:{r+1}], v{vBO}, s[{S_B}:{S_B+3}], s{soff} offen offset:{nt*32}')

def publish_frag(a, u, mt, slow):
    r = xo(u, mt)
    a(f'  ds_write_b128 v{vPUB}, v[{r}:{r+3}] offset:{u*8192 + mt*1024}')
    s = sT0 if u == 0 else sT1
    a(f'  buffer_store_dwordx4 v[{r}:{r+3}], v{vPUB}, s[{S_S}:{S_S+3}], s{s} offen offset:{mt*1024}' + (' sc1' if slow else ''))

def epi_math(a, u, mt):
    T = XF + 16
    for p in range(2):
        nt = 2*u + p
        for h in range(2):
            d = xo(u, mt) + 2*p + h
            t = T + 2*(2*p + h) + 8*((2*u + mt) % 2)
            a(f'  v_lshlrev_b32 v{t}, 16, v{d}')
            a(f'  v_and_b32 v{t+1}, 0xffff0000, v{d}')
    for p in range(2):
        nt = 2*u + p
        for h in range(2):
            t = T + 2*(2*p + h) + 8*((2*u + mt) % 2)
            xa = x0f(nt, mt) + 2*h; ac = acc(nt, mt) + 2*h
            a(f'  v_pk_fma_f32 v[{t}:{t+1}], v[{xa}:{xa+1}], v[{ac}:{ac+1}], v[{t}:{t+1}]')
    for p in range(2):
        for h in range(2):
            d = xo(u, mt) + 2*p + h
            t = T + 2*(2*p + h) + 8*((2*u + mt) % 2)
            a(f'  v_cvt_pk_bf16_f32 v{d}, v{t}, v{t+1}')

def compute(a, c):
    a(f'''
  s_lshr_b32 s{sWM}, s{sWAVE}, 1
  s_and_b32 s{sWN}, s{sWAVE}, 1
  v_and_b32 v{vT}, 15, v0
  v_lshrrev_b32 v{vT+1}, 4, v0         ; G
  ; vIO = m*2048 + G*8
  v_lshlrev_b32 v{vIO}, 11, v{vT}
  v_lshl_add_u32 v{vIO}, v{vT+1}, 3, v{vIO}
  s_lshl_b32 s{sT0}, s{sG}, 1
  s_add_u32 s{sT0}, s{sT0}, s{sWM}
  s_lshl_b32 s{sIOB}, s{sT0}, 17
  s_lshl_b32 s{sT0}, s{sJ}, 1
  s_add_u32 s{sT0}, s{sT0}, s{sWN}
  s_lshl_b32 s{sBOFF}, s{sT0}, 7
  s_add_u32 s{sIOB}, s{sIOB}, s{sBOFF}
''')
    for mt in range(4):
        a(f'  s_add_u32 s{sT0}, s{sIOB}, {mt*16*2048}')
        for nt in range(4):
            r = xo(nt//2, mt) + 2*(nt % 2)
            a(f'  buffer_load_dwordx2 v[{r}:{r+1}], v{vIO}, s[{S_X0}:{S_X0+3}], s{sT0} offen offset:{nt*32}')
    a(f'  v_lshlrev_b32 v{vBO}, 3, v{vT+1}        ; G*8')
    L = []; bias_loads(L, sBOFF)
    for l in L: a(l)
    a(f'''
  v_lshrrev_b32 v{vT+2}, 2, v{vT}          ; r
  v_lshl_add_u32 v{vT+2}, v{vT+1}, 2, v{vT+2}   ; row
  v_and_b32 v{vT+3}, 7, v{vT+2}            ; row & 7
  v_lshlrev_b32 v{vT+2}, 8, v{vT+2}
  v_and_b32 v{vT+4}, 3, v0
  v_lshl_add_u32 v{vT+2}, v{vT+4}, 3, v{vT+2}
  v_add_u32 v{vT+2}, 0x10000, v{vT+2}
  s_lshl_b32 s{sT0}, s{sWN}, 2''')
    for nt in range(4):
        a(f'  s_add_u32 s{sT1}, s{sT0}, {nt}\n  v_xor_b32 v{vT+4}, s{sT1}, v{vT+3}\n  v_lshl_add_u32 v{vWA+nt}, v{vT+4}, 5, v{vT+2}')
    a(f'''
  s_lshl_b32 s{sT0}, s{sWM}, 12
  v_lshlrev_b32 v{vXA}, 4, v0
  v_add_u32 v{vXA}, s{sT0}, v{vXA}
  s_lshl_b32 s{sT0}, s{sWN}, 14
  v_add_u32 v{vPUB}, s{sT0}, v{vXA}         ; + wn*16384
  s_lshl_b32 s{sT0}, s{sJ}, 2
  s_add_u32 s{sT0}, s{sT0}, s{sWAVE}
  s_lshl_b32 s{sT0}, s{sT0}, 2
  s_lshl_b32 s{sT1}, s{sG}, 7
  s_add_u32 s{sT0}, s{sT0}, s{sT1}
  v_mov_b32 v{vFO}, 0x40000000
  v_mov_b32 v{vT+4}, s{sT0}
  v_cmp_eq_u32 vcc, 0, v0
  s_nop 1
  v_cndmask_b32 v{vFO}, v{vFO}, v{vT+4}, vcc
  v_mov_b32 v{vFV}, 1
  s_lshl_b32 s{sPB}, s{sG}, 18
  s_lshl_b32 s{sT0}, s{sJ}, 15
  s_add_u32 s{sPB}, s{sPB}, s{sT0}
  s_add_u32 s{sPB}, s{sPB}, {XB:#x}
  s_mov_b32 s{sL}, 0
  s_mov_b32 s{sCUP}, 0x8000
  s_mov_b32 s{sCDN}, 0xffff0000
  s_mov_b32 s{sGRP}, 0
  s_waitcnt vmcnt(0)''')
    for mt in range(4):
        for nt in range(4):
            for h in range(2):
                src = xo(nt//2, mt) + 2*(nt % 2) + h
                d = x0f(nt, mt) + 2*h
                a(f'  v_lshlrev_b32 v{d}, 16, v{src}\n  v_and_b32 v{d+1}, 0xffff0000, v{src}')
    bias_unpack(a)
    a(f'''
  s_barrier
  v_mov_b32 v{vT}, {7*8192}
  ds_read_b32 v{vT+1}, v{vT}
  s_waitcnt lgkmcnt(0)
  v_readfirstlane_b32 s{sMODE}, v{vT+1}
  s_nop 3
  s_mov_b32 s{sT0}, s{sPB}
  s_add_u32 s{sT1}, s{sPB}, 8192''')
    if c['force_slow']: a(f'  s_mov_b32 s{sMODE}, 0')
    a(f'''  s_cmp_eq_u32 s{sMODE}, 0
  s_cbranch_scc1 L_pub0_slow''')
    for mt in range(4):
        for u in range(2): publish_frag(a, u, mt, False)
    a('L_layer:')
    q = Q()
    a('  s_waitcnt lgkmcnt(0)\n  s_barrier')
    if c['timing']: stamp(a, 0)
    for tag, t in step_reads(0, 0, 0):
        a(t); q.issue(tag)
    emit_step(a, q, 0, step_reads(1, 1, 1), cinit=True)
    a(f'''  s_add_u32 s{sBOFF}, s{sBOFF}, 2048
  s_waitcnt vmcnt(0)
  s_cmp_eq_u32 s{sMODE}, 0
  s_cbranch_scc1 L_flag_slow
  buffer_store_dword v{vFV}, v{vFO}, s[{S_S}:{S_S+3}], 0 offen
L_flag_done:''')
    L = []; bias_loads(L, sBOFF)
    emit_step(a, q, 1, step_reads(0, 2, 2), pre=L)
    emit_step(a, q, 0, step_reads(1, 3, 3))
    a('  s_barrier')
    body_tail_pre = [
        f'  s_add_u32 s{sGRP}, s{sGRP}, 1',
        f'  s_cmp_eq_u32 s{sGRP}, 3',
        f'  s_cselect_b32 s{sDL}, s{sCDN}, s{sCUP}',
        f'  s_cselect_b32 s{sGRP}, 0, s{sGRP}',
        f'  v_xor_b32 v{vXA}, 0x8000, v{vXA}'] + [f'  v_add_u32 v{vWA+nt}, s{sDL}, v{vWA+nt}' for nt in range(4)]
    emit_step(a, q, 1, step_reads(0, 0, 0), pre=body_tail_pre)
    a(f'  s_mov_b32 s{sQ}, 7\nL_body:')
    qb = Q(); qb.q = list(q.q)
    for s in range(4):
        a('  s_barrier')
        if s < 3: emit_step(a, qb, s % 2, step_reads((s+1) % 2, s+1, s+1))
        else: emit_step(a, qb, 1, step_reads(0, 0, 0), pre=body_tail_pre)
    assert qb.q == q.q
    a(f'''  s_sub_u32 s{sQ}, s{sQ}, 1
  s_cmp_lg_u32 s{sQ}, 0
  s_cbranch_scc1 L_body''')
    if c['timing']: stamp(a, 1)
    a(f'''  s_waitcnt vmcnt(0)
  s_add_u32 s{sL}, s{sL}, 1
  s_cmp_eq_u32 s{sL}, {NL}
  s_cbranch_scc1 L_final
  s_add_u32 s{sPB}, s{sPB}, 0x800000
  s_mov_b32 s{sT0}, s{sPB}
  s_add_u32 s{sT1}, s{sPB}, 8192
  v_add_u32 v{vFV}, 1, v{vFV}
  s_cmp_eq_u32 s{sMODE}, 0
  s_cbranch_scc1 L_epi_slow''')
    def epilogue(slow):
        for mt in range(4):
            for u in range(2):
                epi_math(a, u, mt)
                publish_frag(a, u, mt, slow)
        bias_unpack(a)
    epilogue(False)
    a('  s_branch L_layer')
    a('L_final:')
    for mt in range(4):
        a(f'  s_add_u32 s{sT0}, s{sIOB}, {mt*16*2048}')
        for u in range(2):
            epi_math(a, u, mt)
            for p in range(2):
                r = xo(u, mt) + 2*p
                a(f'  buffer_store_dwordx2 v[{r}:{r+1}], v{vIO}, s[{S_O}:{S_O+3}], s{sT0} offen offset:{(2*u+p)*32}')
    if c['timing']: stamp_out(a)
    a('  s_waitcnt vmcnt(0)\n  s_endpgm')
    a('L_pub0_slow:')
    for mt in range(4):
        for u in range(2): publish_frag(a, u, mt, True)
    a('  s_branch L_layer')
    a(f'L_flag_slow:\n  buffer_store_dword v{vFV}, v{vFO}, s[{S_S}:{S_S+3}], 0 offen sc1\n  s_branch L_flag_done')
    a('L_epi_slow:')
    epilogue(True)
    a('  s_branch L_layer')

TS = 70
def stamp(a, k):
    a(f'''  s_memtime s[{TS}:{TS+1}]
  s_memrealtime s[{TS+2}:{TS+3}]
  s_lshl_b32 s{TS+4}, s2, 2
  s_add_u32 s{TS+4}, s{TS+4}, s{sWAVE}
  s_lshl_b32 s{TS+4}, s{TS+4}, 8
  s_lshl_b32 s{TS+5}, s{sL}, 4
  s_add_u32 s{TS+4}, s{TS+4}, s{TS+5}
  s_add_u32 s{TS+4}, s{TS+4}, {0x3800000 + 8*k}
  s_waitcnt lgkmcnt(0)
  v_mov_b32 v{vT+4}, s{TS}
  v_mov_b32 v{vT+5}, s{TS+2}
  v_and_b32 v{vT+3}, 0x40000000, v{vFO}
  buffer_store_dwordx2 v[{vT+4}:{vT+5}], v{vT+3}, s[{S_S}:{S_S+3}], s{TS+4} offen''')
def stamp_out(a):
    a(f'''  s_waitcnt vmcnt(0)
  s_memtime s[{TS}:{TS+1}]
  s_memrealtime s[{TS+2}:{TS+3}]
  s_lshl_b32 s{TS+4}, s2, 2
  s_add_u32 s{TS+4}, s{TS+4}, s{sWAVE}
  s_lshl_b32 s{TS+4}, s{TS+4}, 8
  s_add_u32 s{TS+4}, s{TS+4}, {0x3800000 + 16*6}
  s_waitcnt lgkmcnt(0)
  v_mov_b32 v{vT+4}, s{TS}
  v_mov_b32 v{vT+5}, s{TS+2}
  v_and_b32 v{vT+3}, 0x40000000, v{vFO}
  buffer_store_dwordx2 v[{vT+4}:{vT+5}], v{vT+3}, s[{S_S}:{S_S+3}], s{TS+4} offen''')

def block_order(a, base, shift, tmp):
    a(f'  s_lshl_b32 s{base}, s{sJ}, {shift}')
    for qq in range(1, 8):
        a(f'''  s_lshl_b32 s{tmp}, s{sIL}, 1
  s_add_u32 s{tmp}, s{tmp}, {qq-1}
  s_cmp_ge_u32 s{tmp}, 7
  s_cselect_b32 s{tmp+1}, 7, 0
  s_sub_u32 s{tmp}, s{tmp}, s{tmp+1}
  s_add_u32 s{tmp}, s{tmp}, s{sJ}
  s_add_u32 s{tmp}, s{tmp}, 1
  s_and_b32 s{tmp}, s{tmp}, 7
  s_lshl_b32 s{base+qq}, s{tmp}, {shift}''')

BARS = [0] + list(range(3, 32))

def xloader(a, c):
    sKB, sK4, sXB, sM0, sRDY, sNEED, sLL, sA, sB_, sSP, sDEAD = 56, 64, 72, 73, 74, 75, 76, 77, 78, 79, 80
    a(f'''
L_xload:
  s_sub_u32 s{sWAVE}, s{sWAVE}, 4
  v_lshlrev_b32 v2, 4, v0               ; lane*16
  v_and_b32 v3, 31, v0
  v_lshlrev_b32 v3, 2, v3
  s_lshl_b32 s{sA}, s{sG}, 7
  v_add_u32 v3, s{sA}, v3
  s_mov_b32 s{sDEAD}, 0''')
    block_order(a, sKB, 15, sA)
    for qq in range(8): a(f'  s_lshr_b32 s{sK4+qq}, s{sKB+qq}, 13')
    a(f'''
  s_cmp_lg_u32 s{sWAVE}, 0
  s_cbranch_scc1 L_x_noreg
  s_lshl_b32 s{sA}, s{sG}, 7
  s_lshl_b32 s{sB_}, s{sJ}, 4
  s_add_u32 s{sA}, s{sA}, s{sB_}
  v_lshlrev_b32 v4, 2, v0
  v_add_u32 v4, s{sA}, v4
  v_mov_b32 v5, 0x40000000
  v_cmp_gt_u32 vcc, 4, v0
  s_nop 1
  v_cndmask_b32 v4, v5, v4, vcc
  v_mov_b32 v6, 0
  buffer_store_dword v6, v4, s[{S_S}:{S_S+3}], 0 offen sc1
  s_getreg_b32 s{sA}, hwreg(HW_REG_XCC_ID, 0, 4)
  s_and_b32 s{sA}, s{sA}, 7
  s_or_b32 s{sA}, s{sA}, 8
  s_and_b32 s{sB_}, s{sJ}, 3
  s_lshl_b32 s{sB_}, s{sB_}, 3
  s_lshl_b32 s{sA}, s{sA}, s{sB_}
  v_mov_b32 v6, s{sA}
  s_lshl_b32 s{sA}, s{sG}, 3
  s_lshr_b32 s{sB_}, s{sJ}, 2
  s_lshl_b32 s{sB_}, s{sB_}, 2
  s_add_u32 s{sB_}, s{sB_}, s{sA}
  v_mov_b32 v7, s{sB_}
  v_cmp_eq_u32 vcc, 0, v0
  s_nop 1
  v_cndmask_b32 v7, v5, v7, vcc
  v_mov_b32 v8, s{sA}
  s_waitcnt vmcnt(0)
  buffer_atomic_add v6, v7, s[{S_D}:{S_D+3}], 0 offen
  s_mov_b32 s{sSP}, {c['spin']}
L_x_regpoll:
  buffer_load_dwordx2 v[10:11], v8, s[{S_D}:{S_D+3}], 0 offen sc1
  s_waitcnt vmcnt(0)
  v_readfirstlane_b32 s{sA}, v10
  v_readfirstlane_b32 s{sB_}, v11
  s_nop 3
  s_and_b32 s{sM0}, s{sA}, s{sB_}
  s_and_b32 s{sM0}, s{sM0}, 0x08080808
  s_cmp_eq_u32 s{sM0}, 0x08080808
  s_cbranch_scc1 L_x_regdone
  s_sleep 2
  s_sub_u32 s{sSP}, s{sSP}, 1
  s_cmp_lg_u32 s{sSP}, 0
  s_cbranch_scc1 L_x_regpoll
  s_mov_b32 s{sDEAD}, 1
L_x_regdone:
  s_and_b32 s{sM0}, s{sA}, 0xff
  s_mul_i32 s{sM0}, s{sM0}, 0x01010101
  s_xor_b32 s{sA}, s{sA}, s{sM0}
  s_xor_b32 s{sB_}, s{sB_}, s{sM0}
  s_or_b32 s{sA}, s{sA}, s{sB_}
  s_cmp_eq_u32 s{sA}, 0
  s_cselect_b32 s{sA}, 1, 0
  v_mov_b32 v6, s{sA}
  v_mov_b32 v7, {7*8192}
  ds_write_b32 v7, v6
  s_waitcnt lgkmcnt(0)
L_x_noreg:
  s_barrier
  s_lshl_b32 s{sXB}, s{sG}, 18
  s_lshl_b32 s{sA}, s{sWAVE}, 12
  s_add_u32 s{sXB}, s{sXB}, s{sA}
  s_add_u32 s{sXB}, s{sXB}, {XB:#x}
  s_lshl_b32 s{sM0}, s{sWAVE}, 12
  s_mov_b32 s{sNEED}, 1
  s_mov_b32 s{sLL}, {NL}
L_x_layer:
  s_mov_b32 s{sRDY}, 0''')
    npoll = [0]
    def check(qq):
        n = npoll[0]; npoll[0] += 1
        a(f'''L_x_chk{n}:
  s_lshr_b32 s{sA}, s{sRDY}, s{sK4+qq}
  s_and_b32 s{sA}, s{sA}, 15
  s_cmp_eq_u32 s{sA}, 15
  s_cbranch_scc1 L_x_ok{n}
  s_mov_b32 s{sSP}, {c['spin']}
L_x_poll{n}:
  buffer_load_dword v9, v3, s[{S_S}:{S_S+3}], 0 offen sc1
  s_waitcnt vmcnt(0)
  v_cmp_le_u32 vcc, s{sNEED}, v9
  s_nop 3
  s_mov_b32 s{sRDY}, vcc_lo
  s_lshr_b32 s{sA}, s{sRDY}, s{sK4+qq}
  s_and_b32 s{sA}, s{sA}, 15
  s_cmp_eq_u32 s{sA}, 15
  s_cbranch_scc1 L_x_ok{n}
  s_cmp_lg_u32 s{sDEAD}, 0
  s_cbranch_scc1 L_x_ok{n}
  s_sleep 1
  s_sub_u32 s{sSP}, s{sSP}, 1
  s_cmp_lg_u32 s{sSP}, 0
  s_cbranch_scc1 L_x_poll{n}
  s_mov_b32 s{sDEAD}, 1
L_x_ok{n}:''')
    vq = Q()
    checked = set()
    def issue(t):
        qq = t//4
        if qq not in checked:
            check(qq); checked.add(qq)
        a(f'  s_add_u32 m0, s{sM0}, {(t % 8)*8192}')
        a(f'  s_add_u32 s{sA}, s{sXB}, s{sKB+qq}')
        if t % 4: a(f'  s_add_u32 s{sA}, s{sA}, {(t % 4)*8192}')
        nt = ' nt' if (c['lastnt'] and qq == 7) else ''
        for u in range(4):
            a(f'  buffer_load_dwordx4 v2, s[{S_S}:{S_S+3}], s{sA} offen offset:{u*1024} sc1{nt} lds'); vq.issue(t)
    lead = c['xlead']
    nxt = 4
    for b in BARS:
        if b >= 3 and b + 1 <= 31:
            n = vq.need({b+1})
            if n is not None: a(f'  s_waitcnt vmcnt({n})')
        a(f'  s_barrier   ; B{b}')
        lim = 7 if b == 0 else min(31, b - 1 + 8, b + lead)
        while nxt <= lim:
            issue(nxt); nxt += 1
    assert nxt == 32 and not vq.q
    a(f'''  s_add_u32 s{sXB}, s{sXB}, 0x800000
  s_add_u32 s{sNEED}, s{sNEED}, 1
  s_sub_u32 s{sLL}, s{sLL}, 1
  s_cmp_lg_u32 s{sLL}, 0
  s_cbranch_scc1 L_x_layer
  s_waitcnt vmcnt(0)
  s_endpgm''')

def wloader(a, c):
    sKB, sWB, sRP, sA, sLL, sM = 56, 64, 65, 66, 67, 68
    a(f'''
L_wload:
  s_sub_u32 s{sWAVE}, s{sWAVE}, 6
  v_lshrrev_b32 v3, 4, v0
  v_and_b32 v4, 15, v0
  v_lshlrev_b32 v5, 1, v3
  v_xor_b32 v6, v4, v5
  v_lshlrev_b32 v6, 4, v6
  v_lshl_add_u32 v6, v3, 11, v6
  v_add_u32 v5, 8, v5
  v_xor_b32 v7, v4, v5
  v_lshlrev_b32 v7, 4, v7
  v_lshl_add_u32 v7, v3, 11, v7''')
    block_order(a, sKB, 18, sA)
    a(f'''  s_lshl_b32 s{sWB}, s{sJ}, 8
  s_lshl_b32 s{sA}, s{sWAVE}, 15
  s_add_u32 s{sWB}, s{sWB}, s{sA}
  s_lshl_b32 s{sM}, s{sWAVE}, 12
  s_add_u32 s{sM}, s{sM}, 0x10000
  s_mov_b32 s{sRP}, 0
  s_mov_b32 s{sLL}, {NL}''')
    vq = Q()
    def issue(T, cur_layer_bumped):
        t = T % 32; qq = t//4
        a(f'  s_add_u32 m0, s{sM}, s{sRP}')
        a(f'  s_add_u32 s{sA}, s{sWB}, s{sKB+qq}')
        off = (t % 4)*65536 + (0x200000 if (T >= 32) else 0)
        for u in range(4):
            a(f'  s_add_u32 s{sA+3}, s{sA}, {off + u*7168}')
            a(f'  buffer_load_dwordx4 v{6 + u % 2}, s[{S_W}:{S_W+3}], s{sA+3} offen offset:{u*1024} lds'); vq.issue(T)
        a(f'''  s_add_u32 s{sRP}, s{sRP}, 8192
  s_cmp_eq_u32 s{sRP}, {12*8192}
  s_cselect_b32 s{sRP}, 0, s{sRP}''')
    for T in range(11): issue(T, False)
    a('  s_barrier')
    a('L_w_layer:')
    wm = c['wmid']
    sched = {b: [] for b in BARS}
    sched[0] = [11]
    T = 12
    for b in BARS[1:]:
        if b <= 24:
            while T <= min(b + wm, 28) and b + wm >= 12: sched[b].append(T); T += 1
        else:
            for _ in range(2):
                sched[b].append(T); T += 1
    assert T == 43, T
    vq.q = [t for t in range(11) for _ in range(4)]
    for b in BARS:
        need = {0, 1, 2, 3} if b == 0 else ({b+1} if b + 1 <= 31 else set())
        n = vq.need(need)
        if n is not None: a(f'  s_waitcnt vmcnt({min(n, 63)})')
        a(f'  s_barrier   ; B{b}')
        for T in sched[b]: issue(T, False)
    a(f'''  s_add_u32 s{sWB}, s{sWB}, 0x200000
  s_sub_u32 s{sLL}, s{sLL}, 1
  s_cmp_lg_u32 s{sLL}, 0
  s_cbranch_scc1 L_w_layer
  s_waitcnt vmcnt(0)
  s_endpgm''')

if __name__ == '__main__':
    import json
    cfg = json.loads(sys.argv[2]) if len(sys.argv) > 2 else {}
    open(sys.argv[1], 'w').write(gen(cfg))
```
